```python
import torch

def _softmax(x, axis=-1):
    return torch.softmax(x, dim=axis)
def _gelu(x):
    return torch.nn.functional.gelu(x, approximate="tanh")
def _silu(x):
    return torch.nn.functional.silu(x)
def _sigmoid(x):
    return torch.sigmoid(x)
def _layernorm(x, axis=-1, eps=1e-5):
    m = x.mean(dim=axis, keepdim=True)
    v = x.var(dim=axis, keepdim=True, unbiased=False)
    return (x - m) / torch.sqrt(v + eps)
def _scatter_add(tgt, idx, src, axis=0):
    return tgt.clone().index_add_(axis, idx, src)
def _segment_sum(src, seg, n):
    out = torch.zeros((n,) + src.shape[1:], dtype=src.dtype)
    return out.index_add_(0, seg, src)
def _pad(x, pw):
    flat = tuple(v for pair in reversed(pw) for v in pair)
    return torch.nn.functional.pad(x, flat)

kernel_name = 'sequential_preLN__softmax_full_mha__mixer_s_mlp__prompt'

def setup_inputs():

    _w = (lambda a: (lambda t: t.to(torch.bfloat16) if t.is_floating_point() else t)(torch.as_tensor(a)))
    def _A_setup():
        B, S, D = 1, 2048, 640
        return {
            "x": _w((lambda *s: torch.randn(*s, dtype=torch.bfloat16) * 0.05)(B, S, D)),
            "wqkv": _w((lambda *s: torch.randn(*s, dtype=torch.bfloat16) * 0.05)(D, 3 * D)),
            "wo": _w((lambda *s: torch.randn(*s, dtype=torch.bfloat16) * 0.05)(D, D)),
        }
    _A_in = _A_setup()

    def _B_setup():
        B, S, D, F = 1, 2048, 640, 1536
        return {
            "x":  _w((lambda *s: torch.randn(*s, dtype=torch.bfloat16) * 0.05)(B, S, D)),
            "w1": _w((lambda *s: torch.randn(*s, dtype=torch.bfloat16) * 3.2)(D, D) * (D ** -0.5)),
            "w2": _w((lambda *s: torch.randn(*s, dtype=torch.bfloat16) * 3.2)(D, D) * (D ** -0.5)),
            "w3": _w((lambda *s: torch.randn(*s, dtype=torch.bfloat16) * 3.2)(D, F) * (D ** -0.5)),
            "w4": _w((lambda *s: torch.randn(*s, dtype=torch.bfloat16) * 3.2)(F, D) * (F ** -0.5)),
        }
    _B_in = _B_setup()

    return {
        "A_x": _A_in["x"],
        "A_wqkv": _A_in["wqkv"],
        "A_wo": _A_in["wo"],
        "B_x": _B_in["x"],
        "B_w1": _B_in["w1"],
        "B_w2": _B_in["w2"],
        "B_w3": _B_in["w3"],
        "B_w4": _B_in["w4"],
    }

def reference(A_x, A_wqkv, A_wo, B_x, B_w1, B_w2, B_w3, B_w4):
    def _A_ref(x, wqkv, wo):
        B, S, D = x.shape
        H = 32; Dh = D // H
        qkv = (lambda x, *d: x.permute(*d))((x @ wqkv).reshape(B, S, 3, H, Dh), 2, 0, 3, 1, 4)
        q, k, v = qkv[0], qkv[1], qkv[2]
        scale = Dh ** -0.5
        scores = torch.einsum("bhqd,bhkd->bhqk", q, k) * scale
        p = _softmax(scores, axis=-1)
        o = torch.einsum("bhqk,bhkd->bhqd", p, v)
        return (lambda x, *d: x.permute(*d))(o, 0, 2, 1, 3).reshape(B, S, D) @ wo

    def _B_ref(x, w1, w2, w3, w4):
        B, S, D = x.shape
        h = _gelu(_layernorm(x, axis=-1) @ w1)
        c = D // 4
        g0 = _pad(h[:, :, 0*c:1*c], ((0, 0), (1, 0), (0, 0)))[:, :S, :]
        g1 = _pad(h[:, :, 1*c:2*c], ((0, 0), (0, 1), (0, 0)))[:, 1:, :]
        g2 = _pad(h[:, :, 2*c:3*c], ((0, 0), (2, 0), (0, 0)))[:, :S, :]
        g3 = _pad(h[:, :, 3*c:   ], ((0, 0), (0, 2), (0, 0)))[:, 2:, :]
        hs = torch.concatenate([g0, g1, g2, g3], axis=-1) @ w2
        x1 = x + hs
        h2 = _gelu(_layernorm(x1, axis=-1) @ w3) @ w4
        return x1 + h2

    x = A_x
    h = x + _A_ref(_layernorm(x, axis=-1), A_wqkv, A_wo)
    h2 = h + _B_ref(_layernorm(h, axis=-1), B_w1, B_w2, B_w3, B_w4)
    return h2
```

```python
import re

def v(i, n=1): return f"v{i}" if n == 1 else f"v[{i}:{i+n-1}]"
def a(i, n=1): return f"a{i}" if n == 1 else f"a[{i}:{i+n-1}]"
def s(i, n=1): return f"s{i}" if n == 1 else f"s[{i}:{i+n-1}]"
def R(x, n=1):
    return v(x, n) if x < 256 else a(x - 256, n)

def op(t): return ('op', t)
def vm(t, tag=None): return ('vm', t, tag)
def ds(t, tag=None): return ('ds', t, tag)
def wvm(tag): return ('wvm', tag)
def wds(tag): return ('wds', tag)
def wall(vmc=True, lgkm=True): return ('wall', vmc, lgkm)
def label(n): return ('label', n)
def raw(t): return ('raw', t)
def reset(): return ('reset',)

def interleave(main, *extras):
    n = len(main)
    ins = [[] for _ in range(n + 1)]
    for lst, f0, f1 in extras:
        m = len(lst)
        for j, it in enumerate(lst):
            pos = int(n * (f0 + (f1 - f0) * (j + 0.5) / m)) if m else 0
            pos = max(0, min(n, pos))
            if isinstance(it, list): ins[pos].extend(it)
            else: ins[pos].append(it)
    out = []
    for i in range(n + 1):
        out.extend(ins[i])
        if i < n:
            if isinstance(main[i], list): out.extend(main[i])
            else: out.append(main[i])
    return out

def flatten(items):
    out = []
    for it in items:
        if isinstance(it, list): out.extend(flatten(it))
        elif isinstance(it, str): out.append(('op', it))
        else: out.append(it)
    return out

def resolve(items):
    vq, lq = [], []
    out = []
    for it in flatten(items):
        k = it[0]
        if k == 'op': out.append(it[1])
        elif k == 'raw': out.append('#RAW ' + it[1])
        elif k == 'label': out.append(it[1] + ':')
        elif k == 'vm':
            out.append(it[1]); vq.append(it[2])
            assert len(vq) <= 63, f"more than 63 vm ops outstanding at {it[1]}"
        elif k == 'ds':
            out.append(it[1]); lq.append(it[2])
        elif k == 'wvm':
            if it[1] in vq:
                idx = len(vq) - 1 - vq[::-1].index(it[1])
                n = len(vq) - 1 - idx
                out.append(f"s_waitcnt vmcnt({n})"); vq = vq[idx + 1:]
        elif k == 'wds':
            if it[1] in lq:
                idx = len(lq) - 1 - lq[::-1].index(it[1])
                n = min(15, len(lq) - 1 - idx)
                out.append(f"s_waitcnt lgkmcnt({n})"); lq = lq[len(lq) - n:] if n else []
        elif k == 'wall':
            p = []
            if it[1]: p.append("vmcnt(0)"); vq = []
            if it[2]: p.append("lgkmcnt(0)"); lq = []
            out.append("s_waitcnt " + " ".join(p))
        elif k == 'reset':
            vq, lq = [], []
        else: raise ValueError(it)
    res = []
    for l in out:
        if l.startswith("s_waitcnt") and res and res[-1].startswith("s_waitcnt"):
            d = {}
            for x in (res[-1], l):
                for m in re.finditer(r"(vmcnt|lgkmcnt)\((\d+)\)", x):
                    d[m.group(1)] = min(d.get(m.group(1), 99), int(m.group(2)))
            res[-1] = "s_waitcnt " + " ".join(f"{k}({d[k]})" for k in ("vmcnt", "lgkmcnt") if k in d)
        else: res.append(l)
    return res

_REG = re.compile(r"\b([vas])(\d+)\b|\b([vas])\[(\d+):(\d+)\]|\b(vcc|exec|m0|vcc_lo|vcc_hi|exec_lo|exec_hi)\b")
def regs_of(opnd):
    out = set()
    for m in _REG.finditer(opnd):
        if m.group(1): out.add((m.group(1), int(m.group(2))))
        elif m.group(3):
            for i in range(int(m.group(4)), int(m.group(5)) + 1): out.add((m.group(3), i))
        else:
            n = m.group(6)
            out.add(('x', n.split('_')[0]))
    return out
TRANS = ("v_exp_f32", "v_log_f32", "v_rcp_f32", "v_rsq_f32", "v_sqrt_f32", "v_sin_f32", "v_cos_f32")
def passes(mn):
    if "32x32x16" in mn or "32x32x8" in mn: return 8
    if "16x16x32" in mn or "16x16x16" in mn: return 4
    if "_2b_" in mn: return 16
    raise ValueError(mn)

class Ins:
    def __init__(self, text):
        self.text = text
        t = text.split(';')[0].strip()
        p = t.split(None, 1)
        self.mn = p[0]
        rest = p[1] if len(p) > 1 else ""
        ops, depth, cur = [], 0, ""
        for ch in rest:
            if ch == '[': depth += 1
            if ch == ']': depth -= 1
            if ch == ',' and depth == 0: ops.append(cur.strip()); cur = ""
            else: cur += ch
        if cur.strip(): ops.append(cur.strip())
        self.ops = ops
        mn = self.mn
        self.mfma = mn.startswith("v_mfma")
        self.valu = mn.startswith("v_") and not self.mfma
        self.vmem = mn.startswith(("buffer_", "global_"))
        self.dsop = mn.startswith("ds_")
        self.salu = mn.startswith("s_")
        self.trans = mn.replace("_e32", "").replace("_e64", "") in TRANS
        self.dpp = "quad_perm" in t or "row_" in t or mn.endswith("_dpp")
        self.w, self.r = set(), set()
        self.C = set(); self.AB = set()
        o = [regs_of(x.split(' ')[0] if i == len(ops) - 1 and not self.vmem else x) for i, x in enumerate(ops)]
        if self.mfma:
            self.w = o[0]; self.AB = o[1] | o[2]; self.C = o[3]; self.r = self.AB | self.C
        elif self.valu:
            if mn.startswith("v_cmp"):
                self.w = o[0]; self.r = set().union(*o[1:])
            elif mn.startswith(("v_permlane", "v_swap")):
                self.w = o[0] | o[1]; self.r = o[0] | o[1]
            elif mn.startswith(("v_add_co", "v_sub_co", "v_addc_co", "v_mad_u64")):
                self.w = o[0] | o[1]; self.r = set().union(*o[2:])
            else:
                self.w = o[0]; self.r = set().union(*o[1:]) if len(o) > 1 else set()
                if mn.startswith(("v_fmac", "v_dot2c", "v_pk_fmac")) or self.dpp: self.r |= o[0]
                if mn.startswith("v_cndmask") and len(ops) == 3: self.r.add(('x', 'vcc'))
        elif self.vmem:
            lds = re.search(r"\blds\b", t) is not None
            self.lds = lds
            if "load" in mn and not lds:
                self.w = o[0]; self.r = set().union(*o[1:])
            elif mn in ("buffer_wbl2", "buffer_inv"):
                pass
            else:
                self.r = set().union(*o)
                if lds: self.r.add(('x', 'm0'))
            self.wide = ("store" in mn) and ("x4" in mn or "x3" in mn)
            self.data = (o[0] if mn.startswith("buffer_") else o[1]) if "store" in mn else set()
        elif self.dsop:
            if "read" in mn or "permute" in mn or "swizzle" in mn:
                self.w = o[0]; self.r = set().union(*o[1:])
            else: self.r = set().union(*o)
        elif self.salu:
            if mn.startswith(("s_cmp", "s_waitcnt", "s_nop", "s_barrier", "s_cbranch", "s_branch", "s_sleep", "s_endpgm", "s_setprio")):
                self.r = set().union(*o) if o else set()
            else:
                self.w = o[0] if o else set(); self.r = set().union(*o[1:]) if len(o) > 1 else set()
        self.states = 1
        if mn == "s_nop": self.states = int(ops[0], 0) + 1

def need(p, c):
    n = 0
    vw = {x for x in p.w if x[0] in 'va'}
    sw = {x for x in p.w if x[0] in 'sx'}
    if p.valu:
        if c.mfma and vw & c.r: n = max(n, 2)
        if c.valu:
            if p.trans and not c.trans and vw & c.r: n = max(n, 1)
            if c.mn.startswith("v_permlane") and vw & c.r: n = max(n, 2)
            if c.dpp and vw & c.r: n = max(n, 2)
            if c.mn.startswith(("v_readlane", "v_readfirstlane")) and vw & c.r: n = max(n, 1)
            if sw & c.r: n = max(n, 2)
        if p.trans and (c.vmem or c.dsop) and vw & c.r: n = max(n, 1)
        if c.vmem and sw & c.r: n = max(n, 5)
        if c.salu and sw & c.r: n = max(n, 1)
    if p.mfma:
        ps = passes(p.mn)
        t = {4: 0, 8: 1, 16: 2}[ps]
        if c.mfma:
            if p.w & c.AB: n = max(n, (8, 12, 20)[t])
            if p.w & c.C:
                if p.w == c.C and passes(c.mn) == ps: pass
                else: n = max(n, (6, 10, 18)[t])
            elif p.w & c.w: n = max(n, (8, 12, 20)[t])
        elif c.valu or c.vmem or c.dsop:
            if p.w & (c.r | c.w): n = max(n, (8, 12, 20)[t])
            if c.valu and p.C & c.w: n = max(n, (3, 7, 15)[t])
    if p.salu and ('x', 'm0') in p.w and c.vmem and getattr(c, 'lds', False): n = max(n, 1)
    if p.vmem and getattr(p, 'wide', False) and (c.valu or c.mfma) and p.data & c.w: n = max(n, 2)
    return n

def fix_hazards(lines, verbose=False):
    out = []; hist = []
    pos = 0; added = 0
    for l in lines:
        if l.startswith('#RAW '): out.append(l[5:]); continue
        if l.endswith(':'): out.append(l); continue
        c = Ins(l)
        req = 0
        for p, ppos in reversed(hist):
            d = pos - ppos
            if d >= 20: break
            k = need(p, c)
            if k - d > req: req = k - d
        if req > 0:
            if verbose: print(f"hazard: +{req} before {l}")
            added += req
            while req > 0:
                k = min(req, 16)
                out.append(f"    s_nop {k-1}"); pos += k; req -= k
        out.append("    " + l)
        pos += c.states
        hist.append((c, pos))
        if len(hist) > 40: hist.pop(0)
    return out, added
```

```python
import math
from dsl import *
from gen import *

AG = 256
VW = [32 + 4*i for i in range(18)]
AW = [AG + 4*i for i in range(64)]
HREG = 104
CSR = 116
ACC = 136
AT = 176
WO_SLOTS = AW[56:64] + VW[0:17]

def wload(slots, base_off_sreg, n0, n1, tagp, stmp):
    out = []
    for n in range(n0, n1):
        it = []
        if n == n0 or n % 4 == 0: it.append(f"s_add_u32 {s(stmp)}, {s(base_off_sreg)}, {(n//4)*4096}")
        it.append(vm(f"buffer_load_dwordx4 {R(slots[n],4)}, v22, {s(SWS,4)}, {s(stmp)} offen offset:{(n%4)*1024} sc1", f"{tagp}{n}"))
        out.append(it)
    return out

def attention(g):
    QM, QR, S, P, O, NM, LMAX, T = 116, 148, (164, 180), (196, 204), (212, 228), 244, 252, 80
    KM = lambda kt: AG + 4*kt
    KR = lambda kt: AG + 64 + 2*kt
    VV = lambda kt, i: AG + 96 + 8*kt + 4*i
    sK, sK2, sKr, sKr2, sV, sQ, sQr, sVm, sLo = 34, 35, 36, 37, 38, 39, 40, 42, 44
    I = []
    I += [f"s_lshr_b32 s32, {s(sRB)}, 1", "s_mul_i32 s32, s32, 5", f"s_and_b32 s33, {s(sRB)}, 1",
          "s_mul_i32 s46, s33, 3", "s_add_u32 s46, s46, s32", "s_lshl_b32 s47, s46, 15",
          "s_add_u32 s48, s32, 2", "s_lshl_b32 s48, s48, 15", "s_lshl_b32 s49, s33, 3", "s_add_u32 s48, s48, s49",
          f"s_lshl_b32 s49, {s(sWV)}, 13", f"s_add_u32 s49, s49, {OFF_QK + 80*32768}",
          f"s_add_u32 {s(sK)}, s47, s49", f"s_add_u32 {s(sK2)}, {s(sK)}, 4096", f"s_add_u32 {s(sKr)}, s48, s49", f"s_add_u32 {s(sKr2)}, {s(sKr)}, 4096",
          f"s_lshl_b32 s49, {s(sCB)}, 12", f"s_add_u32 s49, s49, {OFF_QK}", f"s_add_u32 {s(sQ)}, s47, s49", f"s_add_u32 {s(sQr)}, s48, s49",
          f"s_mul_i32 s41, {s(sRB)}, 81920", f"s_mul_i32 s49, {s(sWV)}, 20480", "s_add_u32 s41, s41, s49", f"s_add_u32 s41, s41, {OFF_V}",
          f"s_mov_b32 {s(sVm)}, 0x0033ffff", f"s_mov_b32 {s(sVm+1)}, 0x0033ffff", f"s_mov_b32 {s(sLo)}, -1", f"s_mov_b32 {s(sLo+1)}, 0"]
    I += [f"v_lshrrev_b32 v2, 5, {v(vL)}", f"v_and_b32 v3, 31, {v(vL)}", "v_lshlrev_b32 v7, 15, v2", "v_lshl_add_u32 v7, v3, 4, v7", f"v_lshlrev_b32 v22, 4, {v(vL)}"]
    I += [f"v_bfe_u32 v9, {v(vL)}, 2, 1", f"v_bfe_u32 v10, {v(vL)}, 3, 1", f"v_and_b32 v11, 3, {v(vL)}",
          "v_lshl_add_u32 v12, v9, 3, v11", "v_lshl_add_u32 v12, v10, 2, v12", "s_lshl_b32 s49, s33, 2", "v_add_u32 v12, s49, v12",
          "v_lshl_add_u32 v13, v9, 1, v11", "s_lshl_b32 s49, s33, 4", "s_sub_u32 s49, 16, s49", "v_add_u32 v13, s49, v13",
          "v_cmp_gt_u32 vcc, 16, v3", "v_cndmask_b32 v12, v13, v12, vcc", "v_mad_u32_u24 v12, v2, 20, v12", "v_lshlrev_b32 v8, 4, v12"]
    I += [f"s_lshr_b32 s49, {s(sRB)}, 3", "s_add_u32 s50, s49, 4", f"s_lshr_b32 s51, {s(sRB)}, 2", f"s_lshl_b32 s52, {s(sWV)}, 6",
          "s_add_u32 s50, s50, s52", "s_add_u32 s51, s51, s52", f"s_lshl_b32 s52, {s(sCB)}, 5", "s_add_u32 s49, s49, s52",
          f"v_and_b32 v9, 7, {v(vL)}", "v_lshlrev_b32 v9, 3, v9", "v_and_b32 v10, 24, v9",
          "v_mov_b32 v11, s50", "v_mov_b32 v12, s51", f"v_cmp_gt_u32 vcc, 8, {v(vL)}", "v_cndmask_b32 v11, v12, v11, vcc", "v_add_u32 v9, v9, v11",
          "v_add_u32 v10, s49, v10", f"v_cmp_gt_u32 vcc, 16, {v(vL)}", "v_cndmask_b32 v9, v10, v9, vcc",
          "v_lshlrev_b32 v9, 7, v9", f"v_add_u32 v9, {OFF_FLAG}, v9"]
    I += [f"v_mov_b32 {v(QR+i)}, 0" for i in range(16)] + [f"v_mov_b32 {v(LMAX)}, 0"]
    I += [f"s_mul_i32 s49, {s(sWV)}, 3072", "v_add_u32 v14, s49, v22", "v_add_u32 v15, 49152, v14"]
    I += g.poll(9, 10) + g.stamp()

    def ldK(kt): return vm(f"buffer_load_dwordx4 {R(KM(kt),4)}, v7, {s(SWS,4)}, {s(sK if kt<8 else sK2)} offen offset:{(kt%8)*512} sc1", f"K{kt}")
    def ldKr(kt): return vm(f"buffer_load_dwordx2 {R(KR(kt),2)}, v7, {s(SWS,4)}, {s(sKr if kt<8 else sKr2)} offen offset:{(kt%8)*512} sc1", f"Kr{kt}")
    def ldV(kt):
        o = []
        if kt % 3 == 0: o.append(f"s_add_u32 {s(sV)}, s41, {kt*1280}")
        return o + [vm(f"buffer_load_dwordx4 {R(VV(kt,i),4)}, v8, {s(SWS,4)}, {s(sV)} offen offset:{(kt%3)*1280+i*640} sc1", f"V{kt}") for i in range(2)]
    def ldQ(qt): return vm(f"buffer_load_dwordx4 {v(QM+4*qt,4)}, v7, {s(SWS,4)}, {s(sQ)} offen offset:{qt*512} sc1", f"Q{qt}")
    def ldQr(qt): return vm(f"buffer_load_dwordx2 {v(QR+2*qt,2)}, v7, {s(SWS,4)}, {s(sQr)} offen offset:{qt*512} sc1", f"Qr{qt}")
    XLO, XV, XA = f"s_mov_b64 exec, {s(sLo,2)}", f"s_mov_b64 exec, {s(sVm,2)}", "s_mov_b64 exec, -1"
    def ldKV(kt): return [ldK(kt), XLO, ldKr(kt), XV] + ldV(kt) + [XA]
    def qk_rem(D, kt, qt): return f"v_mfma_f32_32x32x8_bf16 {v(D,16)}, {R(KR(kt),2)}, {v(QR+2*qt,2)}, 0"
    def qk_main(D, kt, qt): return f"v_mfma_f32_32x32x16_bf16 {v(D,16)}, {R(KM(kt),4)}, {v(QM+4*qt,4)}, {v(D,16)}"
    def maxtree(D, dst, first=True):
        o = [f"v_max3_f32 {v(D+3*i)}, {v(D+3*i)}, {v(D+3*i+1)}, {v(D+3*i+2)}" for i in range(5)]
        o += [f"v_max3_f32 {v(D)}, {v(D)}, {v(D+3)}, {v(D+6)}", f"v_max3_f32 {v(D+9)}, {v(D+9)}, {v(D+12)}, {v(D+15)}"]
        o += [f"v_max_f32 {v(dst)}, {v(D)}, {v(D+9)}"] if first else [f"v_max3_f32 {v(dst)}, {v(D)}, {v(D+9)}, {v(dst)}"]
        return o
    def m0_fin(D, qt):
        return maxtree(D, D) + [f"v_cvt_pk_bf16_f32 {v(D+1)}, -{v(D)}, 0", f"v_lshlrev_b32 {v(NM+qt)}, 16, {v(D+1)}",
                                f"v_cndmask_b32 {v(QR+2*qt)}, {v(QR+2*qt)}, {v(D+1)}, {s(sHI,2)}"]
    PF = 4
    I += [ldK(0), ldQ(0), ldQ(1), XLO, ldKr(0), ldQr(0), ldQr(1), XV] + ldV(0) + [XA]
    for kt in range(1, PF): I += ldKV(kt)
    I += [wvm("Qr1"), qk_rem(S[0], 0, 0), qk_rem(S[1], 0, 1), qk_main(S[0], 0, 0), qk_main(S[1], 0, 1)]
    I += m0_fin(S[0], 0) + m0_fin(S[1], 1)
    I += [qk_rem(S[0], 0, 0), qk_main(S[0], 0, 0)]

    extra = {}
    def add(sl, q, items): extra.setdefault((sl, q), []).extend(items)
    for kt in range(PF, 16): add(2*(kt-PF), 1, ldKV(kt))
    add(24, 1, [ldQ(2), ldQ(3), XLO, ldQr(2), ldQr(3), XA]); add(33, 1, [ldQ(4), ldQ(5), XLO, ldQr(4), ldQr(5), XA]); add(35, 1, [ldQ(6), ldQ(7), XLO, ldQr(6), ldQr(7), XA])
    for qt, sl in ((2, 28), (3, 29), (4, 44), (5, 46), (6, 48), (7, 50)):
        add(sl, 0, [wvm(f"Qr{qt|1}"), qk_rem(T, 0, qt)]); add(sl, 1, [qk_main(T, 0, qt)]); add(sl, 4, m0_fin(T, qt))
    Lp1, Lp2 = g.lab("ps"), g.lab("ps")
    ps = [wall(True, False), f"s_cmp_eq_u32 {s(66)}, 1", f"s_cbranch_scc1 {Lp1}"]
    ps += [f"buffer_store_dwordx4 {v(32+4*f,4)}, v22, {s(SWS,4)}, {s(65)} offen offset:{f*1024} sc1" for f in range(4)]
    ps += [f"s_add_u32 s49, {s(65)}, 4096", f"buffer_store_dwordx4 {v(48,4)}, v22, {s(SWS,4)}, s49 offen sc1", f"s_branch {Lp2}", label(Lp1)]
    for w in range(4):
        ps += [f"s_add_u32 s49, {s(65)}, {w*61440}"] + [f"buffer_store_dwordx4 {v(32+12*w+4*t,4)}, v22, {s(SWS,4)}, s49 offen offset:{t*1024} sc1" for t in range(3)]
    ps += [label(Lp2)]
    add(54, 1, ps)
    add(66, 1, [wall(True, False), "s_lshl_b32 s49, s2, 2", f"s_add_u32 s49, s49, {s(sWV)}", "s_lshl_b32 s49, s49, 2", f"s_add_u32 s49, s49, {OFF_PFLAG}",
                "v_mov_b32 v9, s49", f"v_mov_b32 v10, {s(sTAG)}", "s_mov_b64 exec, 1", vm(f"buffer_store_dword v10, v9, {s(SWS,4)}, 0 offen sc1"), XA])
    if g.stop >= 3:
        Lc, Ld = g.lab("pchk"), g.lab("pchkd")
        def pfl(): return [f"buffer_load_dwordx4 {v(T+4*i,4)}, v22, {s(SWS,4)}, s49 offen offset:{i*1024} sc1" for i in range(4)]
        add(88, 1, [f"s_mov_b32 s49, {OFF_PFLAG}", f"s_mov_b32 {s(sSPIN)}, {SPIN}"] + [vm(x) for x in pfl()])
        chk = [label(Lc), wall(True, False)]
        chk += [f"v_xor_b32 {v(T+i)}, {s(sTAG)}, {v(T+i)}" for i in range(16)]
        chk += [f"v_or3_b32 {v(T+3*i)}, {v(T+3*i)}, {v(T+3*i+1)}, {v(T+3*i+2)}" for i in range(5)]
        chk += [f"v_or3_b32 {v(T)}, {v(T)}, {v(T+3)}, {v(T+6)}", f"v_or3_b32 {v(T+9)}, {v(T+9)}, {v(T+12)}, {v(T+15)}", f"v_or_b32 {v(T)}, {v(T)}, {v(T+9)}",
                f"v_cmp_ne_u32 vcc, 0, {v(T)}", f"s_sub_u32 {s(sSPIN)}, {s(sSPIN)}, 1", f"s_cbranch_scc1 {Ld}", "s_nop 2", f"s_cbranch_vccz {Ld}"] + pfl() + [f"s_branch {Lc}", label(Ld)]
        chk += [f"s_mul_i32 s50, {s(sCB)}, 102400", f"s_mul_i32 s51, {s(sWV)}, 25600", "s_add_u32 s50, s50, s51", f"s_add_u32 s51, s50, {OFF_WO}"]
        add(94, 1, chk)
        wl = wload(WO_SLOTS, 51, 0, 25, "Wo", 49)
        for n, it in enumerate(wl): add(96 + n, 1, it)
        add(95, 1, [f"v_and_b32 v9, 15, {v(vL)}", "v_mul_u32_u24 v9, 1280, v9", f"v_lshrrev_b32 v10, 4, {v(vL)}", "v_lshl_add_u32 v23, v10, 4, v9", "v_lshl_add_u32 v24, v10, 3, v9",
                    f"s_lshl_b32 s52, {s(sRB)}, 2", f"s_add_u32 s52, s52, {s(sWV)}", "s_mul_i32 s53, s52, 20480", f"s_mul_i32 s54, {s(sCB)}, 160", "s_add_u32 s54, s54, s53"])
        add(122, 1, [vm(f"buffer_load_dwordx4 {v(HREG,4)}, v23, {s(SX,4)}, s54 offen")])
        add(123, 1, [vm(f"buffer_load_dwordx4 {v(HREG+4,4)}, v23, {s(SX,4)}, s54 offen offset:64")])
        add(124, 1, [vm(f"buffer_load_dwordx2 {v(HREG+8,2)}, v24, {s(SX,4)}, s54 offen offset:128")])

    def owrite(qt):
        X = qt & 1
        base, off = ("v14", qt*12288) if qt < 4 else ("v15", (qt-4)*12288)
        return [f"v_mov_b32 {v(O[X]+11)}, {v(NM+qt)}", f"v_max_f32 {v(LMAX)}, {v(LMAX)}, {v(O[X]+10)}", f"v_cmp_u_f32 vcc, {v(O[X]+10)}, {v(O[X]+10)}", f"s_or_b64 {s(56,2)}, {s(56,2)}, vcc"] + \
               [ds(f"ds_write_b128 {base}, {v(O[X]+4*i,4)} offset:{off+i*1024}") for i in range(3)]
    I += [f"s_mov_b64 {s(56,2)}, 0"]
    for qt in range(6): add(32*(qt//2) + 30 + (qt&1) + 2, 2, owrite(qt))
    def slot_ids(sl): return (sl & 31) >> 1, 2*(sl >> 5) + (sl & 1)
    def pv(sl, i):
        kt, qt = slot_ids(sl); X = sl & 1
        C = "0" if (kt == 0 and i == 0) else v(O[X], 16)
        return f"v_mfma_f32_32x32x16_bf16 {v(O[X],16)}, {R(VV(kt,i),4)}, {v(P[sl&1]+4*i,4)}, {C}"
    for sl in range(128):
        Sc, Pc = S[sl & 1], P[sl & 1]
        mm = [[], [], [], []]
        if sl + 1 < 128:
            kt, qt = slot_ids(sl + 1)
            mm[0] = [wvm(f"Kr{kt}"), qk_rem(S[(sl+1)&1], kt, qt)]; mm[1] = [qk_main(S[(sl+1)&1], kt, qt)]
        if sl >= 1:
            mm[2] = [wvm(f"V{slot_ids(sl-1)[0]}"), pv(sl-1, 0)]; mm[3] = [pv(sl-1, 1)]
        for q in range(4):
            I += mm[q] + extra.pop((sl, q), [])
            I += [f"v_exp_f32 {v(Sc+4*q+e)}, {v(Sc+4*q+e)}" for e in range(4)]
            I += [f"v_cvt_pk_bf16_f32 {v(Pc+2*q+e)}, {v(Sc+4*q+2*e)}, {v(Sc+4*q+2*e+1)}" for e in range(2)]
        I += extra.pop((sl, 4), [])
    assert not extra, extra.keys()
    I += [pv(127, 0), pv(127, 1)] + owrite(6) + owrite(7)
    I += [f"v_cmp_le_f32 vcc, {hx(fbits(2.0**60))}, {v(LMAX)}", f"s_or_b64 vcc, vcc, {s(56,2)}", "s_cbranch_vccnz L_fallback", label("L_fb_ret")]
    I += g.stamp()
    I += [wall(False, True), "s_barrier"]
    B = 116
    I += [f"s_mul_i32 s49, {s(sWV)}, 24576", "v_add_u32 v14, s49, v22", "v_or_b32 v15, 512, v14"]
    for z in range(2):
        for w in range(4): I.append(ds(f"ds_read_b32 {v(212+4*z+w)}, v15 offset:{z*12288+w*3072+2048+12}", f"m{z}"))
    for z in range(2):
        for w in range(4):
            for i in range(3): I.append(ds(f"ds_read_b128 {v(B+48*z+12*w+4*i,4)}, v14 offset:{z*12288+w*3072+i*1024}", f"o{z}{w}"))
    I += [f"v_bfe_u32 v9, {v(vL)}, 4, 1", "v_mul_u32_u24 v9, 20480, v9", f"v_and_b32 v10, 15, {v(vL)}", "v_lshl_add_u32 v9, v10, 4, v9",
          f"v_lshrrev_b32 v10, 5, {v(vL)}", "v_lshl_add_u32 v10, v10, 8, v9", f"v_mov_b32 v11, {hx(OOB)}", f"v_cndmask_b32 v9, v9, v11, {s(sHI,2)}",
          f"s_lshl_b32 s49, {s(sCB)}, 2", f"s_add_u32 s49, s49, {s(sWV)}", "s_mul_i32 s49, s49, 81920", f"s_add_u32 s49, s49, {OFF_O}",
          "s_lshl_b32 s46, s46, 8", "s_add_u32 s46, s46, s49",
          "s_add_u32 s47, s32, 2", "s_lshl_b32 s47, s47, 8", "s_lshl_b32 s48, s33, 3", "s_add_u32 s47, s47, s48", "s_add_u32 s47, s47, s49"]
    for z in range(2):
        M = 212 + 4*z; F = 220 + 8*z
        I += [wds(f"m{z}"), f"v_min3_f32 v12, {v(M)}, {v(M+1)}, {v(M+2)}", f"v_min_f32 v12, v12, {v(M+3)}"]
        I += [f"v_sub_f32 {v(M+w)}, v12, {v(M+w)}" for w in range(4)] + [f"v_exp_f32 {v(F+2*w)}, {v(M+w)}" for w in range(4)]
    for z in range(2):
        F = 220 + 8*z; Z = B + 48*z
        for w in range(4):
            I.append(wds(f"o{z}{w}"))
            for k in range(6):
                if w == 0: I.append(f"v_pk_mul_f32 {v(Z+2*k,2)}, {v(Z+2*k,2)}, {v(F,2)} op_sel_hi:[1,0]")
                else: I.append(f"v_pk_fma_f32 {v(Z+2*k,2)}, {v(Z+12*w+2*k,2)}, {v(F+2*w,2)}, {v(Z+2*k,2)} op_sel_hi:[1,0,1]")
        I += [f"v_rcp_f32 {v(Z+10)}, {v(Z+10)}"]
        I += [f"v_pk_mul_f32 {v(Z+2*k,2)}, {v(Z+2*k,2)}, {v(Z+10,2)} op_sel_hi:[1,0]" for k in range(5)]
        I += [f"v_cvt_pk_bf16_f32 {v(Z+12+k)}, {v(Z+2*k)}, {v(Z+2*k+1)}" for k in range(5)] + [f"v_mov_b32 {v(Z+17)}, {v(Z+16)}"]
        if z == 1: I += ["s_add_u32 s46, s46, 40960", "s_add_u32 s47, s47, 40960"]
        I += [vm(f"buffer_store_dwordx4 {v(Z+12,4)}, v10, {s(SWS,4)}, s46 offen sc1"),
              f"v_permlane32_swap_b32 {v(Z+16)}, {v(Z+17)}",
              vm(f"buffer_store_dwordx2 {v(Z+16,2)}, v9, {s(SWS,4)}, s47 offen sc1")]
    I += [wall(True, False), f"s_lshl_b32 s33, {s(sCB)}, 5", f"s_add_u32 s33, s33, {s(sRB)}"] + g.post(1, 33, 2, 3)
    I += g.stamp()

    FB = [label("L_fallback"), reset(), "s_waitcnt vmcnt(0) lgkmcnt(0)", "s_mov_b32 s58, 0", f"s_mov_b32 s59, {s(sQr)}", f"s_mov_b32 s55, {s(sQ)}", "v_mov_b32 v16, v14", label("L_fb_loop")]
    FB += [f"v_mov_b32 {v(QR)}, 0", f"v_mov_b32 {v(QR+1)}, 0",
           f"buffer_load_dwordx4 {v(QM,4)}, v7, {s(SWS,4)}, s55 offen sc1", XLO, f"buffer_load_dwordx2 {v(QR,2)}, v7, {s(SWS,4)}, s59 offen sc1", XA, "s_waitcnt vmcnt(0)"]
    for kt in range(16):
        FB += [qk_rem(S[0], kt, 0), qk_main(S[0], kt, 0)] + maxtree(S[0], NM, kt == 0)
    FB += [f"v_mov_b32 {v(NM+1)}, {v(NM)}", f"v_permlane32_swap_b32 {v(NM)}, {v(NM+1)}", f"v_max_f32 {v(NM)}, {v(NM)}, {v(NM+1)}", f"v_sub_f32 {v(NM)}, 0, {v(NM)}",
           f"v_and_b32 {v(NM+1)}, {s(sM16)}, {v(NM)}", f"v_sub_f32 {v(NM+2)}, {v(NM)}, {v(NM+1)}", f"v_and_b32 {v(NM+3)}, {s(sM16)}, {v(NM+2)}",
           f"v_sub_f32 {v(NM+4)}, {v(NM+2)}, {v(NM+3)}", f"v_lshrrev_b32 {v(NM+1)}, 16, {v(NM+1)}", f"v_or_b32 {v(NM+1)}, {v(NM+1)}, {v(NM+3)}", f"v_lshrrev_b32 {v(NM+4)}, 16, {v(NM+4)}",
           f"v_cndmask_b32 {v(QR)}, {v(QR)}, {v(NM+1)}, {s(sHI,2)}", f"v_cndmask_b32 {v(QR+1)}, {v(QR+1)}, {v(NM+4)}, {s(sHI,2)}"]
    for kt in range(16):
        FB += [qk_rem(S[0], kt, 0), qk_main(S[0], kt, 0)]
        FB += [f"v_exp_f32 {v(S[0]+e)}, {v(S[0]+e)}" for e in range(16)] + [f"v_cvt_pk_bf16_f32 {v(P[0]+e)}, {v(S[0]+2*e)}, {v(S[0]+2*e+1)}" for e in range(8)]
        FB += [pv(2*kt, 0), pv(2*kt, 1)]
    FB += [f"v_mov_b32 {v(O[0]+11)}, {v(NM)}"] + [f"ds_write_b128 v16, {v(O[0]+4*i,4)} offset:{i*1024}" for i in range(3)]
    FB += ["s_waitcnt lgkmcnt(0)", "v_add_u32 v16, 12288, v16", "s_add_u32 s55, s55, 512", "s_add_u32 s59, s59, 512", "s_add_u32 s58, s58, 1", "s_cmp_lt_u32 s58, 8", "s_cbranch_scc1 L_fb_loop",
           "s_branch L_fb_ret"]
    return I, FB


LDS_SS = 61440
LDS_CO = 63488
LDS_A6 = 81920
GK = 2.0 * math.sqrt(2.0 / math.pi) * math.log2(math.e)
vCON = 30
vMU = 20

def gelu_pairs(pairs, tmp):
    o = []
    T = lambda k: tmp + 2*k
    for k, (z, d) in enumerate(pairs): o.append(f"v_pk_mul_f32 {v(T(k),2)}, {v(z,2)}, {v(z,2)}")
    for k, (z, d) in enumerate(pairs): o.append(f"v_pk_fma_f32 {v(T(k),2)}, {v(T(k),2)}, {v(vCON,2)}, {v(vCON,2)} op_sel:[0,0,1] op_sel_hi:[1,0,1]")
    for k, (z, d) in enumerate(pairs): o.append(f"v_pk_mul_f32 {v(T(k),2)}, {v(T(k),2)}, {v(z,2)}")
    for k, (z, d) in enumerate(pairs): o += [f"v_exp_f32 {v(T(k))}, {v(T(k))}", f"v_exp_f32 {v(T(k)+1)}, {v(T(k)+1)}"]
    for k, (z, d) in enumerate(pairs): o.append(f"v_pk_add_f32 {v(T(k),2)}, {v(T(k),2)}, 1.0 op_sel_hi:[1,0]")
    for k, (z, d) in enumerate(pairs): o += [f"v_rcp_f32 {v(T(k))}, {v(T(k))}", f"v_rcp_f32 {v(T(k)+1)}, {v(T(k)+1)}"]
    for k, (z, d) in enumerate(pairs): o.append(f"v_pk_mul_f32 {v(T(k),2)}, {v(T(k),2)}, {v(z,2)}")
    for k, (z, d) in enumerate(pairs): o.append(f"v_cvt_pk_bf16_f32 {v(d)}, {v(T(k))}, {v(T(k)+1)}")
    return o

def flag_addr(ph, kind):
    base = OFF_FLAG + ph*32768
    if kind == "att":
        return [f"s_lshr_b32 s32, {s(sRB)}, 2", "s_lshl_b32 s32, s32, 5", f"s_lshl_b32 s33, {s(sWV)}, 3", "s_add_u32 s32, s32, s33", "s_lshl_b32 s32, s32, 7", f"s_add_u32 s32, s32, {base}",
                f"v_and_b32 v9, 7, {v(vL)}", "v_lshl_add_u32 v9, v9, 7, s32"]
    o = [f"s_lshl_b32 s32, {s(sRB)}, 10", f"s_lshl_b32 s33, {s(sWV)}, 8", f"s_add_u32 s33, s33, {base}", "s_add_u32 s32, s32, s33",
         f"v_and_b32 v9, 1, {v(vL)}", "v_lshl_add_u32 v9, v9, 7, s32"]
    if kind == "halo":
        o += [f"s_and_b32 s34, {s(sWV)}, 1", "s_lshl_b32 s34, s34, 1", f"s_add_u32 s34, s34, {s(sRB)}", "s_add_u32 s34, s34, 31", "s_and_b32 s34, s34, 31",
              "s_lshl_b32 s34, s34, 10", "s_add_u32 s34, s34, s33", "s_sub_u32 s34, s34, s32",
              f"v_bfe_u32 v10, {v(vL)}, 1, 1", "v_mul_lo_u32 v10, v10, s34", "v_add_u32 v9, v9, v10"]
    return o

def a_bases(off, mts, ksw):
    o = [f"s_mul_i32 s34, {s(sRB)}, {4*mts}", f"s_mul_i32 s35, {s(sWV)}, {ksw*1024}", "s_add_u32 s34, s34, s35", f"s_add_u32 s34, s34, {off}"]
    for jj in range(4):
        o += [f"s_add_u32 s35, {s(sWV)}, {jj+1}", "s_and_b32 s35, s35, 3", f"s_mul_i32 s35, s35, {mts}", f"s_add_u32 {s(36+jj)}, s34, s35"]
    return o

def stats_load(off):
    return [[f"s_lshl_b32 s40, {s(sRB)}, 12", f"s_lshl_b32 s41, {s(sWV)}, 8", "s_add_u32 s40, s40, s41", f"s_add_u32 s40, s40, {off}",
            f"v_lshrrev_b32 v14, 4, {v(vL)}", "v_lshlrev_b32 v14, 10, v14", f"v_and_b32 v15, 15, {v(vL)}", "v_lshl_add_u32 v14, v15, 2, v14"],
            [vm(f"buffer_load_dword {v(10+i)}, v14, {s(SWS,4)}, s40 offen offset:{64*i} sc1", "st") for i in range(4)]]
def stats_share():
    return [wvm("st"), "v_pk_add_f32 v[10:11], v[10:11], v[12:13]", f"s_lshl_b32 s41, {s(sWV)}, 9", f"v_lshl_add_u32 v14, {v(vL)}, 3, s41",
            ds(f"ds_write_b64 v14, v[10:11] offset:{LDS_SS}")]
def stats_read(vaddr, dst): return [ds(f"ds_read_b64 {v(dst+2*w,2)}, {vaddr} offset:{LDS_SS+512*w}", "ss") for w in range(4)]
def stats_fin(src):
    return [wds("ss"), f"v_pk_add_f32 {v(src,2)}, {v(src,2)}, {v(src+2,2)}", f"v_pk_add_f32 {v(src+4,2)}, {v(src+4,2)}, {v(src+6,2)}", f"v_pk_add_f32 {v(src,2)}, {v(src,2)}, {v(src+4,2)}",
            f"v_mul_f32 {v(src)}, {hx(fbits(1/640))}, {v(src)}", f"v_mul_f32 {v(src+1)}, {hx(fbits(1/640))}, {v(src+1)}",
            f"v_fma_f32 {v(src+1)}, -{v(src)}, {v(src)}, {v(src+1)}", f"v_max_f32 {v(src+1)}, 0, {v(src+1)}"]

def gemmA(ksw, W, wtag, Apool, side, pre=(), mid=(), upfront=20):
    nA = 4*ksw
    def aslot(f): return Apool[f % len(Apool)]
    al = []
    for jj in range(4):
        for i in range(ksw):
            it = []
            sreg = 36 + jj
            if i >= 4:
                if i % 4 == 0: it.append(f"s_add_u32 s35, {s(36+jj)}, {(i//4)*4096}")
                sreg = 35
            it.append(vm(f"buffer_load_dwordx4 {R(aslot(jj*ksw+i),4)}, v22, {s(SWS,4)}, {s(sreg)} offen offset:{(i%4)*1024} sc1", f"A{jj*ksw+i}"))
            al.append(it)
    I = list(pre) + al[:upfront]
    main = []
    for jj in range(4):
        D = ACC + 20*(jj & 1)
        for i in range(ksw):
            f = jj*ksw + i
            for t in range(5):
                it = []
                if t == 0:
                    it.append(wvm(f"A{f}"))
                    if f + upfront < nA: it += al[f + upfront]
                if jj == 0: it.append(wvm(f"{wtag}{i*5+t}"))
                C = "0" if i == 0 else v(D+4*t, 4)
                it.append(f"v_mfma_f32_16x16x32_bf16 {v(D+4*t,4)}, {R(W[i*5+t],4)}, {R(aslot(f),4)}, {C}")
                if jj > 0 and i in (2, 3) and (i-2)*5+t < 10 and ((i-2)*5+t) % 2 == 0:
                    tt = ((i-2)*5+t)//2
                    it.append(ds(f"ds_write_b128 {v(25+jj-1)}, {v(ACC+20*((jj-1)&1)+4*tt,4)} offset:{tt*1024}"))
                main.append(it)
    I += interleave(main, (side, 0.0, 0.98), (list(mid), 0.3, 0.4))
    I += [wall(False, True), "s_barrier"]
    return I
def red_read(): return [ds(f"ds_read_b128 {v(AT+20*jj+4*t,4)}, v28 offset:{jj*5120+t*1024}", f"r{jj}") for jj in range(3) for t in range(5)]
def red_sum():
    o = []
    for jj in range(3):
        o.append(wds(f"r{jj}"))
        o += [f"v_pk_add_f32 {v(ACC+20+2*k,2)}, {v(ACC+20+2*k,2)}, {v(AT+20*jj+2*k,2)}" for k in range(10)]
    return o
VAL = ACC + 20
def unpack(src, dst):
    o = []
    for k in range(10): o += [f"v_lshlrev_b32 {v(dst+2*k)}, 16, {v(src+k)}", f"v_and_b32 {v(dst+2*k+1)}, {s(sM16)}, {v(src+k)}"]
    return o
def store_frag(pk, va, vb, sreg):
    T = AT + 76
    return [vm(f"buffer_store_dwordx4 {v(pk,4)}, {va}, {s(SWS,4)}, {s(sreg)} offen sc1"),
            f"v_mov_b32 {v(T)}, {v(pk+8)}", f"v_mov_b32 {v(T+1)}, {v(pk+9)}", f"v_mov_b32 {v(T+2)}, {v(pk+8)}", f"v_mov_b32 {v(T+3)}, {v(pk+9)}",
            vm(f"buffer_store_dwordx4 {v(pk+4,4)}, {va}, {s(SWS,4)}, {s(sreg)} offen offset:1024 sc1"),
            f"v_permlane16_swap_b32 {v(T)}, {v(T+2)}", f"v_permlane16_swap_b32 {v(T+1)}, {v(T+3)}",
            vm(f"buffer_store_dwordx4 {v(T,4)}, {vb}, {s(SWS,4)}, {s(sreg)} offen offset:2048 sc1", "store")]
def stats_pub(val, off):
    A, Bq = AT + 60, AT + 64
    o = [f"v_pk_add_f32 {v(A,2)}, {v(val,2)}, {v(val+2,2)}", f"v_pk_add_f32 {v(A+2,2)}, {v(val+4,2)}, {v(val+6,2)}",
         f"v_pk_mul_f32 {v(Bq,2)}, {v(val,2)}, {v(val,2)}", f"v_pk_mul_f32 {v(Bq+2,2)}, {v(val+2,2)}, {v(val+2,2)}"]
    for k in range(4, 10): o.append(f"v_pk_add_f32 {v(A+2*(k&1),2)}, {v(A+2*(k&1),2)}, {v(val+2*k,2)}")
    for k in range(2, 10): o.append(f"v_pk_fma_f32 {v(Bq+2*(k&1),2)}, {v(val+2*k,2)}, {v(val+2*k,2)}, {v(Bq+2*(k&1),2)}")
    o += [f"v_pk_add_f32 {v(A,2)}, {v(A,2)}, {v(A+2,2)}", f"v_pk_add_f32 {v(Bq,2)}, {v(Bq,2)}, {v(Bq+2,2)}",
          f"v_add_f32 {v(A)}, {v(A)}, {v(A+1)}", f"v_add_f32 {v(Bq)}, {v(Bq)}, {v(Bq+1)}",
          f"v_permlane16_swap_b32 {v(A)}, {v(Bq)}", f"v_add_f32 {v(A)}, {v(A)}, {v(Bq)}", f"v_mov_b32 {v(Bq)}, {v(A)}",
          f"v_permlane32_swap_b32 {v(A)}, {v(Bq)}", f"v_add_f32 {v(A)}, {v(A)}, {v(Bq)}",
          f"s_lshl_b32 s40, {s(sRB)}, 2", f"s_add_u32 s40, s40, {s(sWV)}", "s_lshl_b32 s40, s40, 10", f"s_lshl_b32 s41, {s(sCB)}, 7", "s_add_u32 s40, s40, s41", f"s_add_u32 s40, s40, {off}",
          vm(f"buffer_store_dword {v(A)}, v19, {s(SWS,4)}, s40 offen sc1", "store")]
    return o

def chain(g):
    W1S = AW[0:25]; W2S = WO_SLOTS
    W3S = AW[25:42] + AW[0:18] + AW[18:25] + AW[42:56] + VW[17:18] + WO_SLOTS[22:25]
    ATS = [AT + 4*i for i in range(20)]
    I = []
    I += [f"s_lshl_b32 s55, {s(sRB)}, 3", f"s_add_u32 s55, s55, {s(sCB)}",
          f"s_mul_i32 s56, {s(sCB)}, 2560", "s_add_u32 s57, s56, s53",
          f"s_mul_i32 s58, {s(sCB)}, 245760", f"s_mul_i32 s59, {s(sWV)}, 61440", "s_add_u32 s58, s58, s59"]
    for jj in range(3):
        I += [f"s_add_u32 s35, {s(sWV)}, {jj+1}", "s_and_b32 s35, s35, 3", "s_mul_i32 s35, s35, 15360", f"s_add_u32 s35, s35, {jj*5120}", f"v_add_u32 {v(25+jj)}, s35, v22"]
    I += [f"s_mul_i32 s35, {s(sWV)}, 15360", "v_add_u32 v28, s35, v22"]
    I += [f"v_and_b32 v10, 15, {v(vL)}", f"v_lshrrev_b32 v11, 5, {v(vL)}", "v_lshlrev_b32 v11, 8, v11", "v_lshl_add_u32 v29, v10, 4, v11",
          f"v_mov_b32 v12, {hx(OOB)}", f"v_and_b32 v11, 16, {v(vL)}", "v_cmp_eq_u32 vcc, 0, v11", "v_cndmask_b32 v29, v12, v29, vcc",
          f"v_lshlrev_b32 v19, 2, {v(vL)}", f"v_cndmask_b32 v19, v19, v12, {s(sHI,2)}",
          f"s_lshl_b32 s35, {s(sWV)}, 7", "v_lshl_add_u32 v18, v10, 3, s35",
          f"v_mov_b32 {v(vCON)}, {hx(fbits(-GK*0.044715))}", f"v_mov_b32 {v(vCON+1)}, {hx(fbits(-GK))}"]
    ONE = AT + 72
    ones = [f"v_mov_b32 {v(ONE+i)}, 0x3f803f80" for i in range(4)]

    I += flag_addr(1, "att") + a_bases(OFF_O, 20480, 5) + [f"s_add_u32 s51, s50, {OFF_W1}"]
    I += g.poll(9, 10) + g.stamp()
    I += gemmA(5, WO_SLOTS, "Wo", ATS, wload(W1S, 51, 0, 25, "W1", 49))
    I += red_read() + unpack(HREG, ACC) + red_sum()
    I += [f"v_pk_add_f32 {v(VAL+2*k,2)}, {v(VAL+2*k,2)}, {v(ACC+2*k,2)}" for k in range(10)]
    I += [f"v_cvt_pk_bf16_f32 {v(HREG+k)}, {v(VAL+2*k)}, {v(VAL+2*k+1)}" for k in range(10)]
    I += [f"s_add_u32 s42, s57, {OFF_H}"] + store_frag(HREG, "v22", "v29", 42) + stats_pub(VAL, OFF_STH)
    cs = ones + [wvm("W124")]
    for i in range(5):
        for t in range(5): cs.append(f"v_mfma_f32_16x16x32_bf16 {v(CSR+4*t,4)}, {R(W1S[i*5+t],4)}, {v(ONE,4)}, {'0' if i==0 else v(CSR+4*t,4)}")
    I += [f"s_add_u32 s51, s58, {OFF_W3}"] + interleave(cs, (wload(W3S, 51, 0, 17, "W3", 49), 0.1, 1.0))
    I += [f"s_mul_i32 s35, {s(sWV)}, 5120", f"s_add_u32 s35, s35, {LDS_A6}", "v_add_u32 v10, s35, v22"]
    I += [ds(f"ds_write_b128 v10, {v(CSR+4*t,4)} offset:{t*1024}") for t in range(5)]
    I += [wvm("store"), wall(False, True)] + g.post(2, 55, 2, 3) + g.stamp()
    I += [f"v_add_u32 v10, {LDS_A6}, v22"] + [ds(f"ds_read_b128 {v(AT+20*w+4*t,4)}, v10 offset:{w*5120+t*1024}", f"c{w}") for w in range(4) for t in range(5)]

    sl = stats_load(OFF_STH)
    I += flag_addr(2, "own") + a_bases(OFF_H, 20480, 5) + sl[0] + [f"s_add_u32 s51, s50, {OFF_W2}"]
    I += [f"s_lshr_b32 s42, {s(sCB)}, 2", "s_add_u32 s42, s42, 1", f"s_bitcmp1_b32 {s(sCB)}, 1", "s_cselect_b32 s43, -1, 1", "s_mul_i32 s42, s42, s43",
          f"s_lshl_b32 s43, {s(sRB)}, 6", "s_add_u32 s42, s42, s43", f"s_lshl_b32 s43, {s(sWV)}, 4", "s_add_u32 s42, s42, s43",
          f"v_and_b32 v16, 15, {v(vL)}", "v_add_u32 v16, s42, v16", "v_mov_b32 v17, 2047", f"v_cmp_gt_u32 {s(46,2)}, v16, v17", "v_and_b32 v16, v17, v16",
          "v_lshrrev_b32 v17, 4, v16", "v_mul_u32_u24 v17, 20480, v17", "v_and_b32 v16, 15, v16", "v_lshl_add_u32 v16, v16, 4, v17",
          "v_and_b32 v17, 0xffffff00, v29", "v_add_u32 v17, v17, v16", f"v_lshrrev_b32 v2, 4, {v(vL)}", "v_lshl_add_u32 v16, v2, 8, v16"]
    I += [wds("c1")] + [f"v_pk_add_f32 {v(CSR+2*k,2)}, {v(AT+2*k,2)}, {v(AT+20+2*k,2)}" for k in range(10)]
    I += [wds("c3")] + [f"v_pk_add_f32 {v(AT+40+2*k,2)}, {v(AT+40+2*k,2)}, {v(AT+60+2*k,2)}" for k in range(10)]
    I += [f"v_pk_add_f32 {v(CSR+2*k,2)}, {v(CSR+2*k,2)}, {v(AT+40+2*k,2)}" for k in range(10)]
    I += g.poll(9, 10) + g.stamp()
    I += gemmA(5, W1S, "W1", ATS, wload(W2S, 51, 0, 25, "W2", 49), pre=sl[1], mid=[stats_share()])
    I += stats_read("v18", 2) + red_read() + stats_fin(2)
    I += [f"v_add_f32 v4, {hx(fbits(1e-5))}, v3", f"v_rsq_f32 {v(vMU)}, v4", f"v_mul_f32 v3, v3, {v(vMU)}", f"v_mul_f32 v3, v3, {v(vMU)}", f"v_add_f32 v3, {hx(fbits(1e-5))}, v3", "v_rsq_f32 v3, v3",
          f"v_mul_f32 {v(vMU+1)}, -v2, {v(vMU)}", f"v_mul_f32 v4, v3, {v(vMU)}", f"v_cndmask_b32 v4, v4, 0, {s(46,2)}", "v_mul_f32 v5, -v2, v4"]
    I += red_sum()
    I += [f"v_pk_mul_f32 {v(VAL+2*k,2)}, {v(VAL+2*k,2)}, v[4:5] op_sel_hi:[1,0]" for k in range(10)]
    I += [f"v_pk_fma_f32 {v(VAL+2*k,2)}, {v(CSR+2*k,2)}, v[4:5], {v(VAL+2*k,2)} op_sel:[0,1,0] op_sel_hi:[1,1,1]" for k in range(10)]
    I += gelu_pairs([(VAL+2*k, AT+k) for k in range(10)], ACC)
    I += [f"s_add_u32 s42, s56, {OFF_G}"] + store_frag(AT, "v16", "v17", 42)
    I += [f"s_add_u32 s51, s58, {OFF_W3}"] + wload(W3S, 51, 17, 35, "W3", 49)
    I += [wvm("store")] + g.post(3, 55, 2, 3) + g.stamp()

    I += flag_addr(3, "halo") + a_bases(OFF_G, 20480, 5)
    I += g.poll(9, 10) + g.stamp()
    I += gemmA(5, W2S, "W2", ATS, wload(W3S, 51, 35, 57, "W3", 49))
    I += red_read() + unpack(HREG, ACC) + red_sum()
    I += [f"v_pk_add_f32 {v(VAL+2*k,2)}, {v(VAL+2*k,2)}, {v(vMU,2)} op_sel:[0,1] op_sel_hi:[1,1]" for k in range(10)]
    I += [f"v_pk_fma_f32 {v(VAL+2*k,2)}, {v(ACC+2*k,2)}, {v(vMU,2)}, {v(VAL+2*k,2)} op_sel_hi:[1,0,1]" for k in range(10)]
    I += [f"v_cvt_pk_bf16_f32 {v(AT+k)}, {v(VAL+2*k)}, {v(VAL+2*k+1)}" for k in range(10)]
    I += [f"s_add_u32 s42, s57, {OFF_X1}"] + store_frag(AT, "v22", "v29", 42) + stats_pub(VAL, OFF_STX)
    I += wload(W3S, 51, 57, 60, "W3", 49)
    I += [f"v_pk_add_f32 {v(CSR+2*k,2)}, {v(VAL+2*k,2)}, {v(ACC+2*k,2)}" for k in range(10)]
    A6, CS3, AFB, T6 = 136, 184, 196, 228
    def cs3(lo, hi):
        return [[wvm(f"W3{n}"), f"v_mfma_f32_16x16x32_bf16 {v(CS3+4*(n%3),4)}, {R(W3S[n],4)}, {v(ONE,4)}, {'0' if n<3 else v(CS3+4*(n%3),4)}"] for n in range(lo, hi)]
    I += ones + ["s_nop 1"] + cs3(0, 45)
    I += [wvm("store")] + g.post(4, 55, 2, 3) + g.stamp()
    I += [wall(True, False)] + cs3(45, 60)

    W4S = list(WO_SLOTS[0:22])
    order = [5*w + i for i in range(5) for w in range(4)]
    freed = [W3S[ks*3+t] for ks in order for t in range(3)]
    W4S += freed[:38]
    sl = stats_load(OFF_STX)
    I += flag_addr(4, "own") + sl[0]
    I += [f"s_mul_i32 s36, {s(sRB)}, 81920", f"s_mul_i32 s37, {s(sWV)}, 5120", "s_add_u32 s36, s36, s37", f"s_add_u32 s36, s36, {OFF_X1}", f"s_add_u32 s37, s37, {LDS_A6}",
          f"v_add_u32 v16, {LDS_A6}, v22", f"v_add_u32 v17, {LDS_A6+40960}, v22", f"s_add_u32 s51, s58, {OFF_W4}"]
    I += g.poll(9, 10) + g.stamp()
    I += sl[1]
    for i in range(5):
        for mt in range(4):
            o = mt*20480 + i*1024
            I += [f"s_add_u32 m0, s37, {o}", f"s_add_u32 s35, s36, {o}", vm(f"buffer_load_dwordx4 v22, {s(SWS,4)}, s35 offen sc1 lds", f"D{i}")]
    I += stats_share() + [wvm("D1"), wall(False, True), "s_barrier"]
    def rdA(j):
        ks = order[j]
        return [ds(f"ds_read_b128 {v(AFB+16*(j&1)+4*mt,4)}, {'v16' if mt<2 else 'v17'} offset:{((mt&1)*20+ks)*1024}", f"a{j}_{mt}") for mt in range(4)]
    w4 = wload(W4S, 51, 0, 60, "W4", 49)
    co = [[f"v_lshlrev_b32 v14, 3, {v(vL)}"] + stats_read("v14", 2),
          stats_fin(2) + [f"v_add_f32 v3, {hx(fbits(1e-5))}, v3", "v_rsq_f32 v4, v3", "s_nop 0", "v_mul_f32 v5, -v2, v4",
                          f"s_lshl_b32 s41, {s(sWV)}, 9", "v_add_u32 v14, s41, v14", ds(f"ds_write_b64 v14, v[4:5] offset:{LDS_CO}", "cw")],
          [wds("cw"), "v_and_b32 v14, 0x67f, v14"] + [ds(f"ds_read_b64 {v(2+2*mt,2)}, v14 offset:{LDS_CO+128*mt}") for mt in range(4)]]
    I += rdA(0)
    for j in range(20):
        ks = order[j]
        nxt = rdA(j+1) if j + 1 < 20 else []
        if j == 7: I += [wvm("D4"), "s_barrier"]
        for mt in range(4):
            I.append(wds(f"a{j}_{mt}"))
            for t in range(3):
                D = A6 + 12*mt + 4*t
                I.append(f"v_mfma_f32_16x16x32_bf16 {v(D,4)}, {R(W3S[ks*3+t],4)}, {v(AFB+16*(j&1)+4*mt,4)}, {'0' if j==0 else v(D,4)}")
                if t == 0 and nxt: I.append(nxt[mt])
                if t == 1 and mt < 3: I += w4[3*j + mt]
        if j in (1, 3, 5): I += co[(j-1)//2]
    I += [wvm("W430"), wall(False, True), f"s_mul_i32 s42, {s(sRB)}, {4*49152}", f"s_mul_i32 s43, {s(sCB)}, 6144", "s_add_u32 s42, s42, s43", f"s_mul_i32 s43, {s(sWV)}, 1536", "s_add_u32 s42, s42, s43", f"s_add_u32 s42, s42, {OFF_U}",
          f"v_bfe_u32 v10, {v(vL)}, 4, 1", "v_mul_u32_u24 v10, 49152, v10", f"v_lshrrev_b32 v11, 5, {v(vL)}", "v_lshl_add_u32 v10, v11, 8, v10", f"v_and_b32 v11, 15, {v(vL)}", "v_lshl_add_u32 v10, v11, 4, v10"]
    PK = AFB
    for half in range(2):
        prs = []
        for mt in (2*half, 2*half+1):
            Z = A6 + 12*mt
            I += [f"v_pk_mul_f32 {v(Z+2*k,2)}, {v(Z+2*k,2)}, {v(2+2*mt,2)} op_sel_hi:[1,0]" for k in range(6)]
            I += [f"v_pk_fma_f32 {v(Z+2*k,2)}, {v(CS3+2*k,2)}, {v(2+2*mt,2)}, {v(Z+2*k,2)} op_sel:[0,1,0] op_sel_hi:[1,1,1]" for k in range(6)]
            prs += [(Z+2*k, PK+4*mt+k if k < 4 else PK+16+2*mt+k-4) for k in range(6)]
        I += gelu_pairs(prs, T6)
        X = PK + 16 + 4*half
        I += [f"s_add_u32 s43, s42, {2*half*49152}", f"s_add_u32 s44, s42, {(2*half+1)*49152}",
              vm(f"buffer_store_dwordx4 {v(PK+8*half,4)}, v22, {s(SWS,4)}, s43 offen sc1"),
              f"v_permlane16_swap_b32 {v(X)}, {v(X+2)}", f"v_permlane16_swap_b32 {v(X+1)}, {v(X+3)}",
              vm(f"buffer_store_dwordx4 {v(PK+8*half+4,4)}, v22, {s(SWS,4)}, s44 offen sc1"),
              vm(f"buffer_store_dwordx4 {v(X,4)}, v10, {s(SWS,4)}, s43 offen offset:1024 sc1")]
    I += [wall(True, False)] + g.post(5, 55, 2, 3) + g.stamp()

    I += flag_addr(5, "own") + a_bases(OFF_U, 49152, 12)
    I += g.poll(9, 10) + g.stamp()
    I += gemmA(12, W4S, "W4", ATS + freed[38:], [])
    I += red_read() + red_sum()
    I += [f"v_pk_add_f32 {v(VAL+2*k,2)}, {v(VAL+2*k,2)}, {v(CSR+2*k,2)}" for k in range(10)]
    I += [f"v_cvt_pk_bf16_f32 {v(AT+k)}, {v(VAL+2*k)}, {v(VAL+2*k+1)}" for k in range(10)]
    I += [vm(f"buffer_store_dwordx4 {v(AT,4)}, v23, {s(SOUT,4)}, s54 offen"), vm(f"buffer_store_dwordx4 {v(AT+4,4)}, v23, {s(SOUT,4)}, s54 offen offset:64"),
          vm(f"buffer_store_dwordx2 {v(AT+8,2)}, v24, {s(SOUT,4)}, s54 offen offset:128")]
    if g.stamps: I += [wall(True, False)]
    return I
```

```python
import sys, math, struct
from dsl import *

NAME = "sequential_preLN__softmax_full_mha__mixer_s_mlp__prompt"
def fbits(x): return struct.unpack("<I", struct.pack("<f", x))[0]
def hx(x): return f"0x{x & 0xffffffff:x}"

OFF_E = 0
OFF_FLAG = 0x1000
OFF_PFLAG = 0x32000
OFF_STAMP = 0x40000
OFF_STH = 0x60000
OFF_STX = 0x80000
OFF_QK = 0x100000
OFF_V = 0x600000
OFF_O = 0x880000
OFF_H = 0xB00000
OFF_G = 0xD80000
OFF_X1 = 0x1000000
OFF_U = 0x1280000
OFF_WP = 0x1880000
WSM = 819200; WBG = 1966080
OFF_WO, OFF_W1, OFF_W2, OFF_W4, OFF_W3 = OFF_WP, OFF_WP + WSM, OFF_WP + 2*WSM, OFF_WP + 3*WSM, OFF_WP + 3*WSM + WBG
WS_USED = OFF_W3 + WBG
ACT = 2621440
OOB = 0x80000000
SPIN = 1 << 17

sWV = 3
SX, SW, SWS, SOUT, SG = 4, 8, 12, 16, 20
sTAG = 24; sRB1 = 25; sCB1 = 26; sRB = 27; sCB = 28
sM16 = 29
sHI = 30
sT0 = 32
sPP = 60
sSPIN = 67
sSTAMP = 70

vL = 1

class G:
    def __init__(self, stop=99, stamps=False, fine=False):
        self.fine = fine; self.stop = stop; self.stamps = stamps; self.nst = 0; self.uid = 0
    def lab(self, p):
        self.uid += 1; return f"L_{p}_{self.uid}"
    def stamp(self):
        if not self.stamps: return []
        i = self.nst; self.nst += 1
        assert i < 15
        return [op(f"s_memrealtime {s(sSTAMP+2*i,2)}"), op(f"s_memtime {s(68,2)}"), wall(False, True), op(f"s_mov_b32 {s(sSTAMP+2*i+1)}, s68")]

    def poll(self, vaddr, vtmp):
        L = self.lab("poll"); D = self.lab("polld")
        return [wall(True, False), op(f"s_mov_b32 {s(sSPIN)}, {SPIN}"), label(L),
                op(f"buffer_load_dword {v(vtmp)}, {v(vaddr)}, {s(SWS,4)}, 0 offen sc1"),
                op("s_waitcnt vmcnt(0)"),
                op(f"v_cmp_ne_u32 vcc, {s(sTAG)}, {v(vtmp)}"),
                op(f"s_sub_u32 {s(sSPIN)}, {s(sSPIN)}, 1"),
                op(f"s_cbranch_scc1 {D}"),
                op("s_nop 2"),
                op(f"s_cbranch_vccnz {L}"),
                label(D)]
    def post(self, ph, sidx, t0, t1):
        L = self.lab("post")
        return [op("s_barrier"),
                op(f"s_cmp_lg_u32 {s(sWV)}, 0"), op(f"s_cbranch_scc1 {L}"),
                op(f"s_lshl_b32 {s(sT0)}, {s(sidx)}, 7"),
                op(f"s_add_u32 {s(sT0)}, {s(sT0)}, {OFF_FLAG + ph*32768}"),
                op(f"v_mov_b32 {v(t0)}, {s(sT0)}"), op(f"v_mov_b32 {v(t1)}, {s(sTAG)}"),
                op("s_mov_b64 exec, 1"),
                op(f"buffer_store_dword {v(t1)}, {v(t0)}, {s(SWS,4)}, 0 offen sc1"),
                op("s_mov_b64 exec, -1"),
                label(L)]

    def prologue(self):
        I = []
        I += ["s_cmp_ge_u32 s2, 256", "s_cbranch_scc1 L_exit"]
        I += [f"s_getpc_b64 {s(32,2)}", label("L_pc")]
        I += [f"s_load_dwordx4 {s(36,4)}, s[0:1], 0", f"s_load_dwordx2 {s(40,2)}, s[0:1], 64", f"s_load_dwordx2 {s(42,2)}, s[0:1], 80"]
        I += ["v_lshrrev_b32 v2, 6, v0", f"v_and_b32 {v(vL)}, 63, v0", f"v_readfirstlane_b32 {s(sWV)}, v2"]
        I += ["s_lshr_b32 s34, s2, 3", "s_and_b32 s35, s34, 3", "s_lshl_b32 s35, s35, 1", f"s_add_u32 s35, s35, {s(sWV)}", "s_lshl_b32 s35, s35, 13"]
        I += [f"v_lshl_add_u32 v2, {v(vL)}, 7, s35", "v_min_u32 v2, L_end-L_pc-4, v2"]
        I += [f"s_cmp_ge_u32 {s(sWV)}, 2", "s_cbranch_scc1 L_nocode", f"global_load_dword v3, v2, {s(32,2)}", label("L_nocode")]
        I += ["s_and_b32 s33, s2, 7",
              f"s_lshr_b32 {s(sRB1)}, s33, 1", f"s_lshl_b32 {s(sRB1)}, {s(sRB1)}, 3", "s_lshr_b32 s35, s34, 2", f"s_add_u32 {s(sRB1)}, {s(sRB1)}, s35",
              f"s_and_b32 {s(sCB1)}, s33, 1", f"s_lshl_b32 {s(sCB1)}, {s(sCB1)}, 2", "s_and_b32 s35, s34, 3", f"s_add_u32 {s(sCB1)}, {s(sCB1)}, s35",
              f"s_lshl_b32 {s(sRB)}, s33, 2", "s_lshr_b32 s35, s34, 3", f"s_add_u32 {s(sRB)}, {s(sRB)}, s35",
              f"s_and_b32 {s(sCB)}, s34, 7",
              f"s_mov_b32 {s(sM16)}, 0xffff0000", f"s_mov_b32 {s(sHI)}, 0", f"s_mov_b32 {s(sHI+1)}, -1"]
        I += ["s_lshl_b32 s44, s2, 2", f"s_add_u32 s44, s44, {s(sWV)}",
              "s_mov_b32 s45, 16", "s_mov_b32 s46, 0", f"s_mov_b32 s47, {OFF_WO}", "s_mov_b32 s48, 20", f"s_mov_b32 {s(62)}, {WSM}", "s_mov_b32 s49, 1280", "s_mov_b32 s50, 160"]
        for thr, ko, base in ((160, 32, OFF_W1), (320, 40, OFF_W2), (480, 56, OFF_W4), (864, 48, OFF_W3)):
            I += [f"s_cmp_ge_u32 s44, {thr}", f"s_cselect_b32 s45, {ko}, s45", f"s_cselect_b32 s46, {thr}, s46", f"s_cselect_b32 s47, {base}, s47"]
            if thr == 480: I += ["s_cselect_b32 s48, 48, s48", f"s_cselect_b32 {s(62)}, {WBG}, {s(62)}"]
            if thr == 864: I += ["s_cselect_b32 s49, 3072, s49", "s_cselect_b32 s50, 384, s50", f"s_cselect_b32 {s(66)}, 1, 0"]
        I += [f"s_load_dwordx2 {s(sPP,2)}, s[0:1], s45",
              "s_sub_u32 s44, s44, s46", "s_lshr_b32 s45, s44, 3", "s_and_b32 s44, s44, 7",
              "s_mul_i32 s51, s45, s49", "s_lshl_b32 s51, s51, 5", "s_mul_i32 s52, s44, s50", f"s_add_u32 {s(63)}, s51, s52",
              f"s_lshl_b32 {s(64)}, s49, 2",
              "s_mul_i32 s51, s44, s48", "s_add_u32 s51, s51, s45", "s_mul_i32 s51, s51, 5120",
              "s_mul_i32 s52, s44, 80", "s_add_u32 s52, s52, s45", "s_mul_i32 s52, s52, 3072",
              f"s_cmp_eq_u32 {s(66)}, 1", "s_cselect_b32 s51, s52, s51", f"s_add_u32 {s(65)}, s47, s51"]
        I += [f"v_lshrrev_b32 v2, 5, {v(vL)}", "v_mul_u32_u24 v2, s49, v2", f"v_and_b32 v4, 31, {v(vL)}", "v_lshlrev_b32 v4, 4, v4",
              "v_cmp_gt_u32 vcc, s50, v4", "v_add_u32 v4, v2, v4", f"v_mov_b32 v2, {hx(OOB)}", "v_cndmask_b32 v4, v2, v4, vcc",
              "s_lshl_b32 s51, s49, 1", "s_sub_u32 s51, s51, 1024", "v_add_u32 v5, s51, v4",
              f"v_lshrrev_b32 v6, 1, {v(vL)}", "v_mul_u32_u24 v6, s49, v6", f"v_and_b32 v2, 1, {v(vL)}", "v_lshl_add_u32 v6, v2, 7, v6"]
        I += ["s_waitcnt lgkmcnt(0)"]
        def srd(d, lo, size): return [f"s_mov_b32 {s(d)}, {s(lo)}", f"s_mov_b32 {s(d+1)}, {s(lo+1)}", f"s_mov_b32 {s(d+2)}, {size}", f"s_mov_b32 {s(d+3)}, 0x20000"]
        I += srd(SX, 36, ACT) + srd(SW, 38, 2457600) + srd(SOUT, 40, ACT) + srd(SWS, 42, WS_USED)
        I += [f"s_add_u32 {s(SG)}, s42, {OFF_G}", f"s_addc_u32 {s(SG+1)}, s43, 0", f"s_mov_b32 {s(SG+2)}, {ACT}", f"s_mov_b32 {s(SG+3)}, 0x20000"]
        I += [f"s_load_dword {s(sTAG)}, {s(42,2)}, {OFF_E}"]
        return I

    XR, LO, ACC1 = 32, 112, 192
    RING = 84480
    def phase1(self):
        XR, LO, ACC = self.XR, self.LO, self.ACC1
        I = []
        I += [f"s_lshl_b32 s32, {s(sRB1)}, 2", f"s_add_u32 s32, s32, {s(sWV)}", "s_mul_i32 s32, s32, 20480",
              f"v_lshrrev_b32 v2, 2, {v(vL)}", "v_mul_u32_u24 v7, 1280, v2", f"v_and_b32 v8, 3, {v(vL)}", "v_lshl_add_u32 v7, v8, 4, v7"]
        for i in range(20):
            I.append(vm(f"buffer_load_dwordx4 {v(XR+4*i,4)}, v7, {s(SX,4)}, s32 offen offset:{64*i}", f"x{i}"))
        I += ["v_mul_u32_u24 v9, 1056, v8", "v_lshl_add_u32 v9, v2, 4, v9", f"s_lshl_b32 s33, {s(sWV)}, 8", "v_add_u32 v9, s33, v9", "v_add_u32 v10, 42240, v9"]
        I += [f"s_mul_i32 s36, {s(sCB1)}, 320", f"s_mul_i32 s37, {s(sCB1)}, 160", "s_add_u32 s37, s37, 2560",
              f"s_lshl_b32 s38, {s(sWV)}, 7", "s_add_u32 s34, s36, s38", "s_add_u32 s35, s34, 64",
              f"s_cmp_eq_u32 {s(sWV)}, 2", "s_cselect_b32 s35, s37, s35",
              "s_add_u32 s38, s37, 64", "s_add_u32 s39, s37, 128",
              f"s_cmp_eq_u32 {s(sWV)}, 3", "s_cselect_b32 s34, s38, s34", "s_cselect_b32 s35, s39, s35"]
        I += [f"s_and_b32 s36, {s(sRB1)}, 7", "s_lshl_b32 s36, s36, 6", "s_add_u32 s36, s36, 128", f"v_add_u32 v2, s36, {v(vL)}", "v_mul_u32_u24 v2, 3840, v2"]
        I += [vm(f"buffer_load_dword v3, v2, {s(SW,4)}, s34 offen"), vm(f"buffer_load_dword v3, v2, {s(SW,4)}, s35 offen offset:32")]
        I += [f"v_lshrrev_b32 v2, 3, {v(vL)}", "v_mul_u32_u24 v11, 3840, v2", "v_lshl_add_u32 v11, v8, 4, v11",
              f"v_lshrrev_b32 v2, 2, {v(vL)}", f"v_lshrrev_b32 v12, 4, {v(vL)}", "v_xor_b32 v2, v2, v12", "v_and_b32 v2, 1, v2",
              "v_cmp_eq_u32 vcc, 1, v2", "v_mov_b32 v2, s34", "v_mov_b32 v12, s35", "v_cndmask_b32 v2, v2, v12, vcc",
              "v_add_u32 v11, v2, v11", f"v_add_u32 v12, {30720-1024}, v11"]
        I += [f"s_lshl_b32 s40, {s(sWV)}, 14", f"s_add_u32 s40, s40, {self.RING}", "s_mov_b32 s41, 0", "s_mov_b32 s42, 61440"]
        I += [f"v_mov_b32 {v(ACC+i)}, 0" for i in range(64)]
        I += ["v_mov_b32 v2, 0x3f803f80", "v_mov_b32 v13, 0x3f80"]
        I += [f"v_accvgpr_write_b32 {a(64+i)}, {'v2' if i%2==0 else 'v13'}" for i in range(32)]
        I += [f"v_accvgpr_write_b32 {a(96+i)}, v2" for i in range(128)]
        if self.fine: I += self.stamp() + [wvm("x0")] + self.stamp()
        SUM, SQ = 14, 18
        I += [f"v_mov_b32 {v(SUM+i)}, 0" for i in range(8)]
        st = []
        for i in range(20):
            st.append(wvm(f"x{i}"))
            for r in range(4): st.append(f"v_lshlrev_b32 {v(LO+4*i+r)}, 16, {v(XR+4*i+r)}")
            for r in range(4): st.append(f"v_and_b32 {v(XR+4*i+r)}, {s(sM16)}, {v(XR+4*i+r)}")
            for k, b in enumerate((LO+4*i, LO+4*i+2, XR+4*i, XR+4*i+2)):
                st.append(f"v_pk_add_f32 {v(SUM+2*(k&1),2)}, {v(SUM+2*(k&1),2)}, {v(b,2)}")
                st.append(f"v_pk_fma_f32 {v(SQ+2*(k&1),2)}, {v(b,2)}, {v(b,2)}, {v(SQ+2*(k&1),2)}")
        dm = []
        for j in range(8):
            dm.append([f"s_add_u32 m0, s40, {2048*j}", "s_nop 0", vm(f"buffer_load_dwordx4 v11, {s(SW,4)}, s41 offen lds")])
            dm.append([vm(f"buffer_load_dwordx4 v12, {s(SW,4)}, s41 offen offset:1024 lds"), "s_add_u32 s41, s41, s42"])
        I += interleave(flatten(st), (dm, 0.0, 0.9))
        I += [f"v_pk_add_f32 {v(SUM,2)}, {v(SUM,2)}, {v(SUM+2,2)}", f"v_pk_add_f32 {v(SQ,2)}, {v(SQ,2)}, {v(SQ+2,2)}",
              f"v_add_f32 {v(SUM)}, {v(SUM)}, {v(SUM+1)}", f"v_add_f32 {v(SQ)}, {v(SQ)}, {v(SQ+1)}"]
        for qp in ("[1,0,3,2]", "[2,3,0,1]"):
            I += [f"v_add_f32_dpp {v(SUM+1)}, {v(SUM)}, {v(SUM)} quad_perm:{qp} row_mask:0xf bank_mask:0xf",
                  f"v_add_f32_dpp {v(SQ+1)}, {v(SQ)}, {v(SQ)} quad_perm:{qp} row_mask:0xf bank_mask:0xf",
                  f"v_mov_b32 {v(SUM)}, {v(SUM+1)}", f"v_mov_b32 {v(SQ)}, {v(SQ+1)}"]
        I += [f"v_mul_f32 {v(SUM)}, {hx(fbits(1/640))}, {v(SUM)}", f"v_mul_f32 {v(SQ)}, {hx(fbits(1/640))}, {v(SQ)}",
              f"v_fma_f32 {v(SQ)}, -{v(SUM)}, {v(SUM)}, {v(SQ)}", f"v_max_f32 {v(SQ)}, 0, {v(SQ)}", f"v_add_f32 {v(SQ)}, {hx(fbits(1e-5))}, {v(SQ)}",
              f"v_rsq_f32 {v(SQ)}, {v(SQ)}", f"v_mul_f32 {v(SQ+1)}, {v(SUM)}, {v(SQ)}"]
        if self.fine: I += self.stamp()
        nm = []
        for i in range(20):
            for b in (LO+4*i, XR+4*i, LO+4*i+2, XR+4*i+2):
                nm.append(f"v_pk_fma_f32 {v(b,2)}, {v(b,2)}, {v(SQ,2)}, {v(SQ,2)} op_sel:[0,0,1] op_sel_hi:[1,0,1] neg_lo:[0,0,1] neg_hi:[0,0,1]")
            for r in range(4): nm.append(f"v_cvt_pk_bf16_f32 {v(XR+4*i+r)}, {v(LO+4*i+r)}, {v(XR+4*i+r)}")
            nm.append(ds(f"ds_write_b128 {'v9' if i<10 else 'v10'}, {v(XR+4*i,4)} offset:{(i%10)*4224}"))
        tch = [[f"s_mov_b32 s44, {s(sPP)}", f"s_mov_b32 s45, {s(sPP+1)}", f"s_mov_b32 s46, {s(62)}", "s_mov_b32 s47, 0x20000",
                vm(f"buffer_load_dword v3, v6, {s(44,4)}, {s(63)} offen")],
               [vm(f"buffer_load_dword v3, v6, {s(44,4)}, {s(63)} offen offset:256")]]
        I += interleave(nm, (tch, 0.0, 0.5))
        I += [f"v_lshrrev_b32 v2, 5, {v(vL)}", "v_mul_u32_u24 v13, 1056, v2", f"v_and_b32 v8, 31, {v(vL)}", "v_lshl_add_u32 v13, v8, 4, v13"]
        I += [f"v_bfe_u32 v16, {v(vL)}, 2, 2", "v_lshl_add_u32 v16, v2, 3, v16", "v_lshlrev_b32 v16, 7, v16", "v_add_u32 v16, s40, v16",
              f"v_bfe_u32 v17, {v(vL)}, 3, 1", "v_lshlrev_b32 v17, 6, v17",
              f"v_bfe_u32 v18, {v(vL)}, 4, 1", "v_lshlrev_b32 v18, 5, v18",
              f"v_and_b32 v19, 3, {v(vL)}", "v_lshl_add_u32 v19, v19, 3, v18",
              f"v_and_b32 v20, 1, {v(vL)}", "v_lshl_add_u32 v20, v20, 4, v18", f"v_bfe_u32 v21, {v(vL)}, 1, 1", "v_lshl_add_u32 v20, v21, 3, v20",
              "v_add_u32 v14, v16, v17", "v_xor_b32 v17, 64, v17", "v_add_u32 v15, v16, v17"]
        I += [wall(True, True), "s_barrier"]
        I += self.stamp()
        I += [f"s_cmp_eq_u32 {s(sWV)}, 2", "s_cbranch_scc1 L_p1_b", f"s_cmp_eq_u32 {s(sWV)}, 3", "s_cbranch_scc1 L_p1_c"]
        I += self.p1_variant("a", (0, 0)) + ["s_branch L_p1_done"]
        I += [label("L_p1_b")] + self.p1_variant("b", (0, 1)) + ["s_branch L_p1_done"]
        I += [label("L_p1_c")] + self.p1_variant("c", (1, 1))
        I += [label("L_p1_done"), reset()]
        if self.fine: I += self.stamp()
        I += ["s_waitcnt vmcnt(8)"]
        I += [f"v_lshrrev_b32 v2, 4, {v(vL)}", f"v_bfe_u32 v16, {v(vL)}, 2, 2", "v_lshl_add_u32 v16, v2, 3, v16", "v_lshlrev_b32 v16, 9, v16", "v_add_u32 v16, s40, v16",
              f"v_and_b32 v2, 3, {v(vL)}", "v_lshl_add_u32 v17, v2, 3, v16", "v_lshl_add_u32 v16, v2, 4, v16"]
        def trf(f, base, off): return [f"ds_read_b64_tr_b16 {v(32+4*f,2)}, {base} offset:{off}", f"ds_read_b64_tr_b16 {v(34+4*f,2)}, {base} offset:{off+2048}"]
        I += [f"s_cmp_eq_u32 {s(66)}, 1", "s_cbranch_scc1 L_prep1"]
        I += trf(0, "v16", 0) + trf(1, "v16", 8) + trf(2, "v16", 64) + trf(3, "v16", 72) + trf(4, "v17", 128) + ["s_branch L_prep2", label("L_prep1")]
        for w in range(4): I += trf(3*w, "v16", 96*w) + trf(3*w+1, "v16", 96*w+8) + trf(3*w+2, "v17", 96*w+64)
        I += [label("L_prep2")]
        I += [wall(True, True), f"s_mul_i32 {s(sTAG)}, {s(sTAG)}, 0x9e3779b1", f"s_add_u32 {s(sTAG)}, {s(sTAG)}, 0x7f4a7c15"]
        I += [f"s_lshl_b32 s33, {s(sRB1)}, 3", f"s_add_u32 s33, s33, {s(sCB1)}"] + self.post(0, 33, 2, 3)
        return I

    def p1_variant(self, nm, types):
        ACC = self.ACC1
        FB = 128
        def AF(b, m): return FB + 16*b + 4*m
        def WF(b, t): return FB + 16*b + 8 + 4*t
        def acc(m, t): return ACC + 32*m + 16*t
        def mf(b, m, t):
            x, y = (WF(b,t), AF(b,m)) if types[t] == 0 else (AF(b,m), WF(b,t))
            return f"v_mfma_f32_32x32x16_bf16 {v(acc(m,t),16)}, {v(x,4)}, {v(y,4)}, {v(acc(m,t),16)}"
        def rdA(b, m, j): return f"ds_read_b128 {v(AF(b,m),4)}, v13 offset:{j*2112 + m*512}"
        def rdW(b, t, j): return [f"ds_read_b64_tr_b16 {v(WF(b,t)+2*h,2)}, {v(14+t)} offset:{(j&7)*2048 + h*512}" for h in range(2)]
        I = [f"v_add_u32 v14, v14, {'v20' if types[0]==0 else 'v19'}", f"v_add_u32 v15, v15, {'v20' if types[1]==0 else 'v19'}"]
        I += [rdA(0,0,0), rdA(0,1,0)] + rdW(0,0,0) + rdW(0,1,0) + ["s_mov_b32 s43, 0"]
        L = f"L_p1loop_{nm}"; L2 = f"L_p1sw_{nm}"
        I += [label(L)]
        for j in range(8):
            c, n = j & 1, (j & 1) ^ 1
            I += ["s_waitcnt vmcnt(12) lgkmcnt(0)", mf(c,0,0), rdA(n,0,j+1)] + rdW(n,0,j+1) + [mf(c,0,1)] + rdW(n,1,j+1) + [rdA(n,1,j+1), mf(c,1,0),
                  f"s_add_u32 m0, s40, {2048*j}", "s_nop 0" if j < 7 else "v_add_u32 v13, 16896, v13", f"buffer_load_dwordx4 v11, {s(SW,4)}, s41 offen lds", mf(c,1,1),
                  f"buffer_load_dwordx4 v12, {s(SW,4)}, s41 offen offset:1024 lds", "s_add_u32 s41, s41, s42"]
        I += ["s_add_u32 s43, s43, 1", "s_cmp_lg_u32 s43, 4", f"s_cbranch_scc1 {L2}",
              f"s_mov_b32 {s(SW)}, {s(sPP)}", f"s_mov_b32 {s(SW+1)}, {s(sPP+1)}", f"s_mov_b32 {s(SW+2)}, {s(62)}",
              "v_mov_b32 v11, v4", "v_mov_b32 v12, v5", f"s_mov_b32 s41, {s(63)}", f"s_mov_b32 s42, {s(64)}",
              label(L2), "s_cmp_lt_u32 s43, 5", f"s_cbranch_scc1 {L}"]
        I += ["s_waitcnt lgkmcnt(0)"]
        I += [f"v_lshrrev_b32 v2, 5, {v(vL)}", f"v_and_b32 v8, 31, {v(vL)}"]
        if 0 in types:
            qs = math.log2(math.e) / math.sqrt(20.0)
            I += ["v_lshlrev_b32 v16, 15, v2", "v_lshl_add_u32 v16, v8, 4, v16",
                  f"s_cmp_lt_u32 {s(sCB1)}, 4", f"s_cselect_b32 s32, {hx(fbits(qs))}, 1.0", "s_mov_b32 s33, s32",
                  f"s_mul_i32 s34, {s(sCB1)}, 20", f"s_lshl_b32 s35, {s(sWV)}, 3", "s_add_u32 s34, s34, s35", "s_lshl_b32 s34, s34, 15",
                  f"s_lshl_b32 s35, {s(sRB1)}, 10", "s_add_u32 s34, s34, s35", f"s_add_u32 s34, s34, {OFF_QK}"]
        if 1 in types:
            I += [f"s_mul_i32 s36, {s(sCB1)}, {4*81920}", f"s_mul_i32 s37, {s(sRB1)}, 2560", "s_add_u32 s36, s36, s37", f"s_add_u32 s36, s36, {OFF_V}",
                  "s_mov_b32 s37, 81920"]
            for t in range(2):
                if types[t] != 1: continue
                tv = 0 if types[0] == 0 else t + 1
                I += [f"v_add_u32 v19, {32*tv}, v8", "v_mul_u32_u24 v20, 205, v19", "v_lshrrev_b32 v20, 12, v20",
                      "v_mul_u32_u24 v21, 20, v20", "v_sub_u32 v21, v19, v21", "v_mad_u32_u24 v21, v2, 20, v21", "v_lshlrev_b32 v21, 4, v21",
                      f"v_mad_u32_u24 {v(17+t)}, v20, s37, v21"]
                if tv == 2:
                    I += ["v_cmp_gt_u32 vcc, 80, v19", f"v_mov_b32 v21, {hx(OOB)}", f"v_cndmask_b32 {v(17+t)}, v21, {v(17+t)}, vcc"]
        for m in range(2):
            for t in range(2):
                A = acc(m, t)
                for i in range(2):
                    if types[t] == 0:
                        I += [f"v_pk_mul_f32 {v(A+8*i+2*k,2)}, {v(A+8*i+2*k,2)}, {s(32,2)}" for k in range(4)]
                    I += [f"v_cvt_pk_bf16_f32 {v(A+8*i+k)}, {v(A+8*i+2*k)}, {v(A+8*i+2*k+1)}" for k in range(4)]
                    if types[t] == 0:
                        I += [f"s_add_u32 s35, s34, {(4*t+2*i)*32768}", f"buffer_store_dwordx4 {v(A+8*i,4)}, v16, {s(SWS,4)}, s35 offen offset:{m*512} sc1"]
                    else:
                        I += [f"buffer_store_dwordx4 {v(A+8*i,4)}, {v(17+t)}, {s(SWS,4)}, s36 offen offset:{(2*m+i)*640} sc1"]
        return I

    def finish(self):
        I = []
        if self.stamps:
            I += self.stamp()
            I += ["s_lshl_b32 s32, s2, 2", f"s_add_u32 s32, s32, {s(sWV)}", "s_lshl_b32 s32, s32, 7", f"s_add_u32 s32, s32, {OFF_STAMP}", "v_mov_b32 v2, 0", "s_mov_b64 exec, 1"]
            for i in range(2*self.nst):
                I += [f"v_mov_b32 v3, {s(sSTAMP+i)}", f"buffer_store_dword v3, v2, {s(SWS,4)}, s32 offen offset:{4*i}", "s_nop 1"]
            I += ["s_mov_b64 exec, -1"]
        I += [f"s_or_b32 s32, s2, {s(sWV)}", "s_cmp_lg_u32 s32, 0", "s_cbranch_scc1 L_exit",
              f"v_mov_b32 v2, {OFF_E}", f"v_mov_b32 v3, {s(sTAG)}", "s_mov_b64 exec, 1", f"buffer_store_dword v3, v2, {s(SWS,4)}, 0 offen"]
        I += [label("L_exit"), "s_endpgm"]
        return I

    def build(self):
        import phases
        I = self.prologue() + self.stamp() + self.phase1()
        tail = []
        if self.stop >= 2:
            x, tail = phases.attention(self); I += x
        if self.stop >= 3: I += phases.chain(self)
        I += self.finish() + tail + [label("L_end")]
        lines, added = fix_hazards(resolve(I))
        hdr = open("cdna_kernels/" + NAME + ".s.ref").read().split("; Override launch")[0]
        txt = hdr + "; Generated by gen/gen.py (hand-written generator). One persistent launch: 256 workgroups x 4 waves.\n"
        txt += "; @launch grid=(256,1,1) block=(256,1,1) lds=163840\n"
        txt += f'.amdgcn_target "amdgcn-amd-amdhsa--gfx950"\n.text\n.globl {NAME}_kernel\n.p2align 8\n.type {NAME}_kernel,@function\n{NAME}_kernel:\n'
        txt += "\n".join(lines) + "\n"
        txt += f'''.section .rodata,"a"
.p2align 6
.amdhsa_kernel {NAME}_kernel
  .amdhsa_next_free_vgpr 512
  .amdhsa_next_free_sgpr 102
  .amdhsa_accum_offset 256
  .amdhsa_group_segment_fixed_size 0
  .amdhsa_kernarg_size 88
  .amdhsa_user_sgpr_count 2
  .amdhsa_user_sgpr_kernarg_segment_ptr 1
  .amdhsa_system_sgpr_workgroup_id_x 1
.end_amdhsa_kernel
'''
        return txt, added

if __name__ == "__main__":
    import argparse
    ap = argparse.ArgumentParser()
    ap.add_argument("--stop", type=int, default=99); ap.add_argument("--stamps", action="store_true"); ap.add_argument("--fine", action="store_true"); ap.add_argument("-o", default="out.s")
    A = ap.parse_args()
    txt, added = G(A.stop, A.stamps, A.fine).build()
    open(A.o, "w").write(txt)
    print("written", A.o, "nop states added:", added)
```
